```python
import torch

def _softmax(x, axis=-1):
    return torch.softmax(x, dim=axis)
def _gelu(x):
    return torch.nn.functional.gelu(x, approximate="tanh")
def _silu(x):
    return torch.nn.functional.silu(x)
def _sigmoid(x):
    return torch.sigmoid(x)
def _layernorm(x, axis=-1, eps=1e-5):
    m = x.mean(dim=axis, keepdim=True)
    v = x.var(dim=axis, keepdim=True, unbiased=False)
    return (x - m) / torch.sqrt(v + eps)
def _scatter_add(tgt, idx, src, axis=0):
    return tgt.clone().index_add_(axis, idx, src)
def _segment_sum(src, seg, n):
    out = torch.zeros((n,) + src.shape[1:], dtype=src.dtype)
    return out.index_add_(0, seg, src)
def _pad(x, pw):
    flat = tuple(v for pair in reversed(pw) for v in pair)
    return torch.nn.functional.pad(x, flat)

kernel_name = 'standalone__rezero__sampling'

def setup_inputs():

    _w = (lambda a: (lambda t: t.to(torch.bfloat16) if t.is_floating_point() else t)(torch.as_tensor(a)))
    B, S, D = 1024, 8, 512
    return {
        "x": _w((lambda *s: torch.randn(*s, dtype=torch.bfloat16) * 0.05)(B, S, D)),
        "fx": _w((lambda *s: torch.randn(*s, dtype=torch.bfloat16) * 1.6)(B, S, D)),
        "alpha": _w((lambda *s: torch.randn(*s, dtype=torch.bfloat16) * 1.6)(1) * 0.1),
    }

def reference(x, fx, alpha):
    return x + alpha * fx
```

```python
import sys, argparse

HEADER = """; Kernarg layout for this problem (48 bytes, ptrs only, base s[0:1]):
; Override launch geometry by editing the next line (default: block=256,
; grid=ceil(out_elems/256), lds=0). Harness parses it; keep it on one line.
"""

NAME = "standalone__rezero__sampling_kernel"
TOTAL = 8 * 1024 * 1024


def compute(xr, fr, tmp, n=4):
    L = []
    for i in range(n):
        x = xr + i
        f = fr + i
        t0, t1 = tmp, tmp + 1
        u0, u1 = tmp + 2, tmp + 3
        L.append(f"v_lshlrev_b32 v{t0}, 16, v{f}")
        L.append(f"v_and_b32 v{t1}, s14, v{f}")
        L.append(f"v_pk_mul_f32 v[{t0}:{t1}], v[{t0}:{t1}], s[12:13]")
        L.append(f"v_lshlrev_b32 v{u0}, 16, v{x}")
        L.append(f"v_cvt_pk_bf16_f32 v{f}, v{t0}, v{t1}")
        L.append(f"v_and_b32 v{u1}, s14, v{x}")
        L.append(f"v_lshlrev_b32 v{t0}, 16, v{f}")
        L.append(f"v_and_b32 v{t1}, s14, v{f}")
        L.append(f"v_pk_add_f32 v[{u0}:{u1}], v[{u0}:{u1}], v[{t0}:{t1}]")
        L.append(f"v_cvt_pk_bf16_f32 v{x}, v{u0}, v{u1}")
    return L


def wrap(L, nwg, block, nv, ns, lds=0, extra_kd=""):
    body = "\n".join(("" if l.endswith(":") else "    ") + l for l in L)
    acc = (nv + 3) // 4 * 4
    return f"""{HEADER}; @launch grid=({nwg},1,1) block=({block},1,1) lds={lds}
.amdgcn_target "amdgcn-amd-amdhsa--gfx950"
.text
.globl {NAME}
.p2align 8
.type {NAME},@function
{NAME}:
{body}
.section .rodata,"a"
.p2align 6
.amdhsa_kernel {NAME}
  .amdhsa_next_free_vgpr {nv}
  .amdhsa_next_free_sgpr {ns}
  .amdhsa_accum_offset {acc}
  .amdhsa_group_segment_fixed_size 0
  .amdhsa_kernarg_size 48
  .amdhsa_user_sgpr_count 2
  .amdhsa_user_sgpr_kernarg_segment_ptr 1
  .amdhsa_system_sgpr_workgroup_id_x 1
  .amdhsa_float_denorm_mode_32 3
{extra_kd}.end_amdhsa_kernel
"""


def mapping(mode, per_wg, nwg):
    import math
    L=[]; A=L.append
    lg = int(math.log2(per_wg))
    if mode == "lin":
        A(f"s_lshl_b32 s3, s2, {lg}")
        return L
    assert per_wg in (4096, 8192)
    inv = mode.endswith("x")
    m = mode.rstrip("x")
    if per_wg == 4096:
        if m == "m1":
            A("s_lshr_b32 s3, s2, 3"); A("s_lshl_b32 s3, s3, 15")
            A("s_and_b32 s15, s2, 1"); A("s_lshl_b32 s15, s15, 12"); A("s_or_b32 s3, s3, s15")
            A("s_and_b32 s15, s2, 2"); A("s_lshl_b32 s15, s15, 13"); A("s_or_b32 s3, s3, s15")
            A("s_lshr_b32 s15, s2, 7"); A("s_xor_b32 s15, s15, s2")
        elif m == "m2":
            A("s_lshr_b32 s3, s2, 5"); A("s_lshl_b32 s3, s3, 17")
            A("s_and_b32 s15, s2, 3"); A("s_lshl_b32 s15, s15, 15"); A("s_or_b32 s3, s3, s15")
            A("s_and_b32 s15, s2, 8"); A("s_lshl_b32 s15, s15, 9"); A("s_or_b32 s3, s3, s15")
            A("s_and_b32 s15, s2, 16"); A("s_lshl_b32 s15, s15, 10"); A("s_or_b32 s3, s3, s15")
            A("s_lshr_b32 s15, s2, 7"); A("s_xor_b32 s15, s15, s2")
        if inv: A("s_xor_b32 s15, s15, 4")
        A("s_and_b32 s15, s15, 4"); A("s_lshl_b32 s15, s15, 11"); A("s_or_b32 s3, s3, s15")
        return L
    raise ValueError

def gen(block=256, unroll=1, ldflags="", stflags="", stamps=False, mp="lin"):
    per_wg = block * 16 * unroll
    nwg = TOTAL // per_wg
    assert nwg * per_wg == TOTAL
    L = []
    A = L.append
    if stamps:
        A("s_memrealtime s[20:21]")
    A(f"s_load_dwordx4 s[4:7], s[0:1], 0")
    A(f"s_load_dwordx4 s[8:11], s[0:1], 16")
    if stamps:
        A("s_load_dwordx2 s[30:31], s[0:1], 40")
        A("v_mov_b32 v7, v0")
    A(f"s_cmp_ge_u32 s2, {nwg}")
    A(f"s_cbranch_scc1 L_done")
    A(f"v_lshlrev_b32 v0, 4, v0")
    L.extend(mapping(mp, per_wg, nwg))
    A(f"v_add_u32 v0, s3, v0")
    step = block * 16
    A(f"s_waitcnt lgkmcnt(0)")
    if stamps:
        A("s_memrealtime s[22:23]")
    A(f"s_load_dword s12, s[8:9], 0")
    base = 8
    addr = []
    for u in range(unroll):
        if u == 0:
            addr.append("v0")
        else:
            A(f"v_add_u32 v{u+1}, {u*step}, v0")
            addr.append(f"v{u+1}")
    assert unroll <= 6 or not stamps or True
    if unroll > 6: base = 12
    xr = [base + 8 * u for u in range(unroll)]
    fr = [base + 8 * u + 4 for u in range(unroll)]
    for u in range(unroll):
        A(f"global_load_dwordx4 v[{fr[u]}:{fr[u]+3}], {addr[u]}, s[6:7] {ldflags}")
        A(f"global_load_dwordx4 v[{xr[u]}:{xr[u]+3}], {addr[u]}, s[4:5] {ldflags}")
    A(f"s_mov_b32 s14, 0xffff0000")
    A(f"s_waitcnt lgkmcnt(0)")
    A(f"s_lshl_b32 s12, s12, 16")
    A(f"s_mov_b32 s13, s12")
    tmp = base + 8 * unroll
    for u in range(unroll):
        A(f"s_waitcnt vmcnt({2*(unroll-1-u) + u})")
        if stamps and u == 0:
            A("s_memrealtime s[24:25]")
        L.extend(compute(xr[u], fr[u], tmp))
        A(f"global_store_dwordx4 {addr[u]}, v[{xr[u]}:{xr[u]+3}], s[10:11] {stflags}")
    nv = tmp + 4
    ns = 18
    if stamps:
        A("s_memrealtime s[26:27]")
        A("s_waitcnt vmcnt(0)")
        A("s_memrealtime s[28:29]")
        A("s_getreg_b32 s33, hwreg(HW_REG_HW_ID)")
        A("s_getreg_b32 s34, hwreg(HW_REG_XCC_ID)")
        A("s_waitcnt lgkmcnt(0)")
        sv = "v7" if unroll <= 5 else "v11"
        if unroll > 5:
            L[L.index("v_mov_b32 v7, v0")] = "v_mov_b32 v11, v0"
        A(f"v_lshrrev_b32 v1, 6, {sv}")
        A(f"s_mul_i32 s35, s2, {block//64}")
        A(f"v_add_u32 v1, s35, v1")
        A(f"v_lshlrev_b32 v1, 5, v1")
        t = tmp - 8
        t = (t + 3) // 4 * 4
        A(f"v_mov_b32 v{t}, s20")
        A(f"v_mov_b32 v{t+1}, s22")
        A(f"v_mov_b32 v{t+2}, s24")
        A(f"v_mov_b32 v{t+3}, s26")
        A(f"v_mov_b32 v{t+4}, s28")
        A(f"v_mov_b32 v{t+5}, s33")
        A(f"v_mov_b32 v{t+6}, s34")
        A(f"v_mov_b32 v{t+7}, s2")
        A(f"v_and_b32 v2, 63, {sv}")
        A(f"v_cmp_eq_u32 vcc, 0, v2")
        A(f"s_and_saveexec_b64 s[36:37], vcc")
        A(f"global_store_dwordx4 v1, v[{t}:{t+3}], s[30:31]")
        A(f"global_store_dwordx4 v1, v[{t+4}:{t+7}], s[30:31] offset:16")
        ns = 40
    A("L_done:")
    A("s_endpgm")
    return wrap(L, nwg, block, nv, ns)


if __name__ == "__main__":
    p = argparse.ArgumentParser()
    p.add_argument("--block", type=int, default=256)
    p.add_argument("--unroll", type=int, default=1)
    p.add_argument("--ld", default="")
    p.add_argument("--st", default="")
    p.add_argument("--stamps", action="store_true")
    p.add_argument("--map", default="lin")
    p.add_argument("-o", default="-")
    a = p.parse_args()
    s = gen(a.block, a.unroll, a.ld, a.st, a.stamps, a.map)
    if a.o == "-":
        print(s)
    else:
        open(a.o, "w").write(s)
```

```python
import sys, argparse, math
from gen import HEADER, NAME, TOTAL, wrap

def compute(xr, fr, tmp, n=4):
    L = []
    A = L.append
    T = lambda i, k: tmp + 4 * i + k
    for i in range(n):
        A(f"v_lshlrev_b32 v{T(i,0)}, 16, v{fr+i}")
        A(f"v_and_b32 v{T(i,1)}, s14, v{fr+i}")
    for i in range(n):
        A(f"v_pk_mul_f32 v[{T(i,0)}:{T(i,1)}], v[{T(i,0)}:{T(i,1)}], s[12:13]")
    for i in range(n):
        A(f"v_cvt_pk_bf16_f32 v{T(i,0)}, 0, v{T(i,0)}")
        A(f"v_cvt_pk_bf16_f32 v{T(i,1)}, 0, v{T(i,1)}")
    mid = len(L)
    for i in range(n):
        A(f"v_lshlrev_b32 v{T(i,2)}, 16, v{xr+i}")
        A(f"v_and_b32 v{T(i,3)}, s14, v{xr+i}")
    for i in range(n):
        A(f"v_pk_add_f32 v[{T(i,2)}:{T(i,3)}], v[{T(i,2)}:{T(i,3)}], v[{T(i,0)}:{T(i,1)}]")
    for i in range(n):
        A(f"v_cvt_pk_bf16_f32 v{xr+i}, v{T(i,2)}, v{T(i,3)}")
    return L[:mid], L[mid:]


def gen(block=256, unroll=1, ld="", st="", hyb=None, split=True, stamps=False):
    per_wg = block * 16 * unroll
    nwg = TOTAL // per_wg
    lg = int(math.log2(per_wg))
    step = block * 16
    L = []
    A = L.append
    if stamps:
        A("s_memrealtime s[20:21]")
        A("s_load_dwordx2 s[30:31], s[0:1], 40")
        A("v_mov_b32 v7, v0")
    A("s_load_dwordx4 s[4:7], s[0:1], 0")
    A(f"s_lshl_b32 s3, s2, {lg}")
    A("v_lshl_add_u32 v0, v0, 4, s3")
    A("s_load_dwordx4 s[8:11], s[0:1], 16")
    A(f"s_cmpk_ge_u32 s2, {nwg}")
    A("s_cbranch_scc1 L_done")
    addr = ["v0"]
    offs = [0]
    for u in range(1, unroll):
        if u * step <= 4095:
            addr.append("v0"); offs.append(u * step)
        else:
            A(f"v_add_u32 v{u}, {u*step}, v0")
            addr.append(f"v{u}"); offs.append(0)
    base = 8
    xr = [base + 8 * u for u in range(unroll)]
    fr = [base + 8 * u + 4 for u in range(unroll)]
    A("s_waitcnt lgkmcnt(0)")
    if stamps: A("s_memrealtime s[22:23]")
    o = lambda u: f" offset:{offs[u]}" if offs[u] else ""
    for u in range(unroll):
        A(f"global_load_dwordx4 v[{fr[u]}:{fr[u]+3}], {addr[u]}, s[6:7]{o(u)} {ld}")
        A(f"global_load_dwordx4 v[{xr[u]}:{xr[u]+3}], {addr[u]}, s[4:5]{o(u)} {ld}")
    A("s_load_dword s12, s[8:9], 0")
    A("s_mov_b32 s14, 0xffff0000")
    if hyb:
        A(f"s_cmpk_lt_u32 s2, {hyb[0]}")
    A("s_waitcnt lgkmcnt(0)")
    A("s_lshl_b32 s12, s12, 16")
    A("s_mov_b32 s13, s12")
    if hyb:
        L.remove(f"s_cmpk_lt_u32 s2, {hyb[0]}")
        A(f"s_cmpk_lt_u32 s2, {hyb[0]}")
        A("s_cbranch_scc1 L_early")
    tmp = base + 8 * unroll
    def body(policy, stamp):
        for u in range(unroll):
            a, b = compute(xr[u], fr[u], tmp)
            out_after = 2 * (unroll - 1 - u) + u
            if split:
                A(f"s_waitcnt vmcnt({out_after+1})")
                L.extend(a)
                A(f"s_waitcnt vmcnt({out_after})")
                if stamp and u == 0: A("s_memrealtime s[24:25]")
                L.extend(b)
            else:
                A(f"s_waitcnt vmcnt({out_after})")
                if stamp and u == 0: A("s_memrealtime s[24:25]")
                L.extend(a); L.extend(b)
            A(f"global_store_dwordx4 {addr[u]}, v[{xr[u]}:{xr[u]+3}], s[10:11]{o(u)} {policy}")
    body(st, stamps)
    def tail():
        if stamps:
            A("s_memrealtime s[26:27]")
            A("s_waitcnt vmcnt(0)")
            A("s_memrealtime s[28:29]")
            A("s_getreg_b32 s33, hwreg(HW_REG_HW_ID)")
            A("s_getreg_b32 s34, hwreg(HW_REG_XCC_ID)")
            A("s_waitcnt lgkmcnt(0)")
            A("v_lshrrev_b32 v1, 6, v7")
            A(f"s_mul_i32 s35, s2, {block//64}")
            A("v_add_u32 v1, s35, v1")
            A("v_lshlrev_b32 v1, 5, v1")
            t = 8
            for k, r in enumerate(["s20","s22","s24","s26","s28","s33","s34","s2"]):
                A(f"v_mov_b32 v{t+k}, {r}")
            A("v_and_b32 v2, 63, v7")
            A("v_cmp_eq_u32 vcc, 0, v2")
            A("s_and_saveexec_b64 s[36:37], vcc")
            A(f"global_store_dwordx4 v1, v[{t}:{t+3}], s[30:31]")
            A(f"global_store_dwordx4 v1, v[{t+4}:{t+7}], s[30:31] offset:16")
    tail()
    if hyb:
        A("s_endpgm")
        A("L_early:")
        body(hyb[1], stamps)
        tail()
    A("L_done:")
    A("s_endpgm")
    nv = tmp + 16
    ns = 40 if stamps else 16
    return wrap(L, nwg, block, nv, ns)

if __name__ == "__main__":
    p = argparse.ArgumentParser()
    p.add_argument("--block", type=int, default=256)
    p.add_argument("--unroll", type=int, default=1)
    p.add_argument("--ld", default="")
    p.add_argument("--st", default="")
    p.add_argument("--hyb", default=None, help="threshold:policy")
    p.add_argument("--stamps", action="store_true")
    p.add_argument("-o", default="-")
    a = p.parse_args()
    hyb = None
    if a.hyb:
        t, pol = a.hyb.split(":")
        hyb = (int(t), pol)
    s = gen(a.block, a.unroll, a.ld, a.st, hyb, True, a.stamps)
    if a.o == "-": print(s)
    else: open(a.o, "w").write(s)
```

```python
import sys, argparse, math
from gen import HEADER, NAME, TOTAL, wrap

def compute(xr, fr, tmp, n=4):
    L = []
    A = L.append
    T = lambda i, k: tmp + 4 * i + k
    for i in range(n):
        A(f"v_lshlrev_b32 v{T(i,0)}, 16, v{fr+i}")
        A(f"v_and_b32 v{T(i,1)}, s14, v{fr+i}")
    for i in range(n):
        A(f"v_pk_mul_f32 v[{T(i,0)}:{T(i,1)}], v[{T(i,0)}:{T(i,1)}], s[12:13]")
    for i in range(n):
        A(f"v_cvt_pk_bf16_f32 v{T(i,0)}, 0, v{T(i,0)}")
        A(f"v_cvt_pk_bf16_f32 v{T(i,1)}, 0, v{T(i,1)}")
    mid = len(L)
    for i in range(n):
        A(f"v_lshlrev_b32 v{T(i,2)}, 16, v{xr+i}")
        A(f"v_and_b32 v{T(i,3)}, s14, v{xr+i}")
    for i in range(n):
        A(f"v_pk_add_f32 v[{T(i,2)}:{T(i,3)}], v[{T(i,2)}:{T(i,3)}], v[{T(i,0)}:{T(i,1)}]")
    for i in range(n):
        A(f"v_cvt_pk_bf16_f32 v{xr+i}, v{T(i,2)}, v{T(i,3)}")
    return L[:mid], L[mid:]


def mapping2(mp, unroll):
    L=[]; A=L.append
    inv = mp.endswith("x")
    if unroll == 1:
        A("s_lshr_b32 s3, s2, 5"); A("s_lshl_b32 s3, s3, 17")
        A("s_and_b32 s15, s2, 3"); A("s_lshl_b32 s15, s15, 15"); A("s_or_b32 s3, s3, s15")
        A("s_and_b32 s15, s2, 8"); A("s_lshl_b32 s15, s15, 9"); A("s_or_b32 s3, s3, s15")
        A("s_and_b32 s15, s2, 16"); A("s_lshl_b32 s15, s15, 10"); A("s_or_b32 s3, s3, s15")
        A("s_lshr_b32 s15, s2, 7"); A("s_xor_b32 s15, s15, s2")
    elif unroll == 2:
        A("s_lshr_b32 s3, s2, 4"); A("s_lshl_b32 s3, s3, 17")
        A("s_and_b32 s15, s2, 3"); A("s_lshl_b32 s15, s15, 15"); A("s_or_b32 s3, s3, s15")
        A("s_and_b32 s15, s2, 8"); A("s_lshl_b32 s15, s15, 11"); A("s_or_b32 s3, s3, s15")
        A("s_lshr_b32 s15, s2, 6"); A("s_xor_b32 s15, s15, s2")
    else: raise ValueError
    if inv: A("s_xor_b32 s15, s15, 4")
    A("s_and_b32 s15, s15, 4"); A("s_lshl_b32 s15, s15, 11"); A("s_or_b32 s3, s3, s15")
    return L

def gen(block=256, unroll=1, ld="", st="", hyb=None, split=True, stamps=False, mp="lin", align12=True):
    per_wg = block * 16 * unroll
    nwg = TOTAL // per_wg
    lg = int(math.log2(per_wg))
    step = block * 16
    L = []
    A = L.append
    if stamps:
        A("s_memrealtime s[20:21]")
        A("s_load_dwordx2 s[30:31], s[0:1], 40")
        A("v_mov_b32 v7, v0")
    A("s_load_dwordx4 s[4:7], s[0:1], 0")
    if mp == "lin":
        A(f"s_lshl_b32 s3, s2, {lg}")
    else:
        L.extend(mapping2(mp, unroll))
    A("v_lshl_add_u32 v0, v0, 4, s3")
    A("s_load_dwordx4 s[8:11], s[0:1], 16")
    A(f"s_cmpk_ge_u32 s2, {nwg}")
    A("s_cbranch_scc1 L_done")
    addr = ["v0"]
    offs = [0]
    for u in range(1, unroll):
        if u * step <= 4095:
            addr.append("v0"); offs.append(u * step)
        else:
            A(f"v_add_u32 v{u}, {u*step}, v0")
            addr.append(f"v{u}"); offs.append(0)
    base = 8
    xr = [base + 8 * u for u in range(unroll)]
    fr = [base + 8 * u + 4 for u in range(unroll)]
    A("s_waitcnt lgkmcnt(0)")
    if stamps: A("s_memrealtime s[22:23]")
    o = lambda u: f" offset:{offs[u]}" if offs[u] else ""
    for u in range(unroll):
        A(f"global_load_dwordx4 v[{fr[u]}:{fr[u]+3}], {addr[u]}, s[6:7]{o(u)} {ld}")
        A(f"global_load_dwordx4 v[{xr[u]}:{xr[u]+3}], {addr[u]}, s[4:5]{o(u)} {ld}")
    A("s_load_dword s12, s[8:9], 0")
    A("s_mov_b32 s14, 0xffff0000")
    if hyb:
        A(f"s_cmpk_lt_u32 s2, {hyb[0]}")
    A("s_waitcnt lgkmcnt(0)")
    A("s_lshl_b32 s12, s12, 16")
    A("s_mov_b32 s13, s12")
    if hyb:
        L.remove(f"s_cmpk_lt_u32 s2, {hyb[0]}")
        A(f"s_cmpk_lt_u32 s2, {hyb[0]}")
        A("s_cbranch_scc1 L_early")
    tmp = base + 8 * unroll
    def body(policy, stamp):
        for u in range(unroll):
            a, b = compute(xr[u], fr[u], tmp)
            out_after = 2 * (unroll - 1 - u) + u
            if split:
                A(f"s_waitcnt vmcnt({out_after+1})")
                L.extend(a)
                A(f"s_waitcnt vmcnt({out_after})")
                if stamp and u == 0: A("s_memrealtime s[24:25]")
                L.extend(b)
            else:
                A(f"s_waitcnt vmcnt({out_after})")
                if stamp and u == 0: A("s_memrealtime s[24:25]")
                L.extend(a); L.extend(b)
            A(f"global_store_dwordx4 {addr[u]}, v[{xr[u]}:{xr[u]+3}], s[10:11]{o(u)} {policy}")
    body(st, stamps)
    def tail():
        if stamps:
            A("s_memrealtime s[26:27]")
            A("s_waitcnt vmcnt(0)")
            A("s_memrealtime s[28:29]")
            A("s_getreg_b32 s33, hwreg(HW_REG_HW_ID)")
            A("s_getreg_b32 s34, hwreg(HW_REG_XCC_ID)")
            A("s_waitcnt lgkmcnt(0)")
            A("v_lshrrev_b32 v1, 6, v7")
            A(f"s_mul_i32 s35, s2, {block//64}")
            A("v_add_u32 v1, s35, v1")
            A("v_lshlrev_b32 v1, 5, v1")
            t = 8
            for k, r in enumerate(["s20","s22","s24","s26","s28","s33","s34","s2"]):
                A(f"v_mov_b32 v{t+k}, {r}")
            A("v_and_b32 v2, 63, v7")
            A("v_cmp_eq_u32 vcc, 0, v2")
            A("s_and_saveexec_b64 s[36:37], vcc")
            A(f"global_store_dwordx4 v1, v[{t}:{t+3}], s[30:31]")
            A(f"global_store_dwordx4 v1, v[{t+4}:{t+7}], s[30:31] offset:16")
    tail()
    if hyb:
        A("s_endpgm")
        A("L_early:")
        body(hyb[1], stamps)
        tail()
    A("L_done:")
    A("s_endpgm")
    nv = tmp + 16
    ns = 40 if stamps else 18
    r = wrap(L, nwg, block, nv, ns)
    if align12: r = r.replace(".text\n", ".text\n.p2align 12\n", 1)
    return r

if __name__ == "__main__":
    p = argparse.ArgumentParser()
    p.add_argument("--block", type=int, default=256)
    p.add_argument("--unroll", type=int, default=1)
    p.add_argument("--ld", default="")
    p.add_argument("--st", default="")
    p.add_argument("--hyb", default=None, help="threshold:policy")
    p.add_argument("--stamps", action="store_true")
    p.add_argument("--map", default="lin")
    p.add_argument("-o", default="-")
    a = p.parse_args()
    hyb = None
    if a.hyb:
        t, pol = a.hyb.split(":")
        hyb = (int(t), pol)
    s = gen(a.block, a.unroll, a.ld, a.st, hyb, True, a.stamps, a.map)
    if a.o == "-": print(s)
    else: open(a.o, "w").write(s)
```

```python
import sys, re
sys.path.insert(0,'gen')
import gen
def probe(base=3000, unit=400):
    s = gen.gen(256, 1)
    pre = ["s_memrealtime s[20:21]",
           "s_load_dwordx4 s[4:7], s[0:1], 0",
           "s_load_dwordx4 s[8:11], s[0:1], 16",
           "s_waitcnt lgkmcnt(0)",
           "v_readfirstlane_b32 s24, v0",
           "s_nop 3",
           "s_or_b32 s24, s24, s2",
           "s_cmp_eq_u32 s24, 0",
           "s_cbranch_scc1 L_probe",
           "s_sleep 127","s_sleep 127","s_sleep 127","s_sleep 127","s_sleep 127","s_sleep 127",
           "s_mov_b32 s26, 0",
           "s_branch L_go",
           "L_probe:",
           "s_sleep 10",
           "s_mov_b32 s26, 0"]
    for t,bp in enumerate((4,6,10)):
        pre += ["v_mov_b32 v1, 0", f"global_load_dword v3, v1, s[{bp}:{bp+1}]", "s_waitcnt vmcnt(0)"]
        for cls,off0 in ((0,4096),(1,8192)):
            pre += [f"s_mov_b32 s{30+cls}, 0xffff"]
            for k in range(3):
                pre += [f"v_mov_b32 v1, {off0+256+k*640}",
                        "s_memtime s[40:41]",
                        f"global_load_dword v3, v1, s[{bp}:{bp+1}]",
                        "s_waitcnt vmcnt(0)",
                        "s_memtime s[42:43]",
                        "s_waitcnt lgkmcnt(0)",
                        "s_sub_u32 s42, s42, s40",
                        f"s_min_u32 s{30+cls}, s{30+cls}, s42"]
        pre += ["s_cmp_gt_u32 s30, s31", f"s_cselect_b32 s32, {1<<t}, 0", "s_or_b32 s26, s26, s32"]
    pre += ["L_go:"]
    name = gen.NAME + ":\n"
    s = s.replace(name, name + "\n".join("    "+l if not l.endswith(":") else l for l in pre) + "\n", 1)
    tail = f"""    s_cmp_lg_u32 s24, 0
    s_cbranch_scc1 L_done
    s_waitcnt vmcnt(0)
    s_mul_i32 s26, s26, {unit}
    s_add_u32 s26, s26, {base}
L_spin:
    s_memrealtime s[22:23]
    s_waitcnt lgkmcnt(0)
    s_sub_u32 s22, s22, s20
    s_cmp_lt_u32 s22, s26
    s_cbranch_scc1 L_spin
L_done:
"""
    s = s.replace("L_done:\n", tail, 1)
    s = re.sub(r"\.amdhsa_next_free_sgpr \d+", ".amdhsa_next_free_sgpr 80", s)
    s = s.replace(".text\n", ".text\n.p2align 12\n", 1)
    return s
open('par.s','w').write(probe())
```

```python
import sys, math
sys.path.insert(0,'gen')
from gen import wrap, TOTAL
from gen2 import compute

def gen(block=1024, unroll=2, depth=1, layout="lin", st="", ld="", stamps=False):
    per_wg = block*16*unroll
    nwg = TOTAL//per_wg
    lg = int(math.log2(per_wg))
    step = block*16
    L=[]; A=L.append
    if stamps:
        A("s_memrealtime s[20:21]")
        A("s_load_dwordx2 s[30:31], s[0:1], 40")
        A("v_mov_b32 v7, v0")
    A("s_load_dwordx8 s[4:11], s[0:1], 0")
    A(f"s_lshl_b32 s3, s2, {lg}")
    addr=["v0"]
    if layout=="lin":
        A("v_lshl_add_u32 v0, v0, 4, s3")
        A(f"s_cmpk_ge_u32 s2, {nwg}")
        A("s_cbranch_scc1 L_done")
        for u in range(1,unroll):
            A(f"v_add_u32 v{u}, {u*step}, v0"); addr.append(f"v{u}")
    elif layout=="alt":
        if block==1024 and unroll==2:
            A("v_lshl_add_u32 v0, v0, 4, s3")
            A(f"s_cmpk_ge_u32 s2, {nwg}")
            A("s_cbranch_scc1 L_done")
            A("v_xor_b32 v1, 0x6000, v0"); addr.append("v1")
        elif block==512 and unroll==2:
            A("v_and_b32 v1, 63, v0")
            A("v_lshlrev_b32 v1, 4, v1")
            A("v_and_b32 v2, 64, v0")
            A("v_lshl_add_u32 v1, v2, 7, v1")
            A("v_and_b32 v2, 0x180, v0")
            A("v_lshl_add_u32 v0, v2, 3, v1")
            A("v_add_u32 v0, s3, v0")
            A(f"s_cmpk_ge_u32 s2, {nwg}")
            A("s_cbranch_scc1 L_done")
            A("v_xor_b32 v1, 0x3000, v0"); addr.append("v1")
        elif block==256 and unroll==4:
            A("v_and_b32 v1, 63, v0")
            A("v_lshlrev_b32 v1, 4, v1")
            A("v_and_b32 v2, 64, v0")
            A("v_lshl_add_u32 v1, v2, 7, v1")
            A("v_and_b32 v2, 0x80, v0")
            A("v_lshl_add_u32 v0, v2, 3, v1")
            A("v_add_u32 v0, s3, v0")
            A(f"s_cmpk_ge_u32 s2, {nwg}")
            A("s_cbranch_scc1 L_done")
            A("v_xor_b32 v1, 0x2800, v0")
            A("v_xor_b32 v2, 0x1000, v0")
            A("v_xor_b32 v3, 0x3800, v0")
            addr += ["v1","v2","v3"]
        else: raise ValueError
    base=8
    xr=[base+8*u for u in range(unroll)]; fr=[base+8*u+4 for u in range(unroll)]
    A("s_waitcnt lgkmcnt(0)")
    if stamps: A("s_memrealtime s[22:23]")
    issued=[]
    def load(u):
        A(f"global_load_dwordx4 v[{fr[u]}:{fr[u]+3}], {addr[u]}, s[6:7] {ld}"); issued.append(("f",u))
        A(f"global_load_dwordx4 v[{xr[u]}:{xr[u]+3}], {addr[u]}, s[4:5] {ld}"); issued.append(("x",u))
    A("s_load_dword s12, s[8:9], 0")
    for u in range(min(depth,unroll)): load(u)
    A("s_mov_b32 s14, 0xffff0000")
    tmp=base+8*unroll
    need=lambda item: len(issued)-1-issued.index(item)
    for u in range(unroll):
        a,b=compute(xr[u],fr[u],tmp)
        if u+depth<unroll:
            A(f"s_waitcnt vmcnt({need(('x',u))})")
            if stamps and u==0: A("s_memrealtime s[24:25]")
            load(u+depth)
            if u==0:
                A("s_waitcnt lgkmcnt(0)"); A("s_lshl_b32 s12, s12, 16"); A("s_mov_b32 s13, s12")
            L.extend(a); L.extend(b)
        else:
            A(f"s_waitcnt vmcnt({need(('f',u))})"); L.extend(a)
            A(f"s_waitcnt vmcnt({need(('x',u))})"); L.extend(b)
        A(f"global_store_dwordx4 {addr[u]}, v[{xr[u]}:{xr[u]+3}], s[10:11] {st}"); issued.append(("s",u))
    if stamps:
        A("s_memrealtime s[26:27]")
        A("s_waitcnt vmcnt(0)")
        A("s_memrealtime s[28:29]")
        A("s_getreg_b32 s33, hwreg(HW_REG_HW_ID)")
        A("s_getreg_b32 s34, hwreg(HW_REG_XCC_ID)")
        A("s_waitcnt lgkmcnt(0)")
        A("v_lshrrev_b32 v1, 6, v7")
        A(f"s_mul_i32 s35, s2, {block//64}")
        A("v_add_u32 v1, s35, v1")
        A("v_lshlrev_b32 v1, 5, v1")
        t = 8
        for k, r in enumerate(["s20","s22","s24","s26","s28","s33","s34","s2"]):
            A(f"v_mov_b32 v{t+k}, {r}")
        A("v_and_b32 v2, 63, v7")
        A("v_cmp_eq_u32 vcc, 0, v2")
        A("s_and_saveexec_b64 s[36:37], vcc")
        A(f"global_store_dwordx4 v1, v[{t}:{t+3}], s[30:31]")
        A(f"global_store_dwordx4 v1, v[{t+4}:{t+7}], s[30:31] offset:16")
    A("L_done:"); A("s_endpgm")
    r=wrap(L,nwg,block,tmp+16,40 if stamps else 16)
    return r.replace(".text\n",".text\n.p2align 12\n",1), nwg
if __name__=="__main__":
    V={"b1024lin":dict(block=1024),"b1024alt":dict(block=1024,layout="alt"),"b512lin":dict(block=512),"b512alt":dict(block=512,layout="alt"),
       "b256u4d2lin":dict(block=256,unroll=4,depth=2),"b256u4d2alt":dict(block=256,unroll=4,depth=2,layout="alt")}
    args=[];files=[]
    for k,kw in V.items():
        s,n=gen(**kw); open(f"y10_{k}.s","w").write(s); args.append(f"v/y10_{k}.co:{n}:{kw['block']}"); files.append(f"v/y10_{k}.co")
    open("y10_args.txt","w").write(" ".join(args))
    import json; print(json.dumps(["bench/bench","v/y10_args.txt"]+files))
    def cover(block,unroll,f):
        s=set()
        for t in range(block):
            for a in f(t): s.add(a)
        assert s==set(range(0,block*16*unroll,16)), (block,unroll)
    cover(1024,2,lambda t:[t*16,(t*16)^0x6000])
    def c512(t):
        a=(t&63)*16+((t&64)<<7)+((t&0x180)<<3); return [a,a^0x3000]
    cover(512,2,c512)
    def c256(t):
        a=(t&63)*16+((t&64)<<7)+((t&0x80)<<3); return [a,a^0x2800,a^0x1000,a^0x3800]
    cover(256,4,c256)
    print("coverage ok")
```

```python
import sys, math
sys.path.insert(0,'gen')
from gen import wrap, TOTAL

def tpart(fr, T):
    L=[]
    for i in range(4):
        L.append(f"v_lshlrev_b32 v{T(i,0)}, 16, v{fr+i}"); L.append(f"v_and_b32 v{T(i,1)}, s14, v{fr+i}")
    for i in range(4): L.append(f"v_pk_mul_f32 v[{T(i,0)}:{T(i,1)}], v[{T(i,0)}:{T(i,1)}], s[12:13]")
    for i in range(4):
        L.append(f"v_cvt_pk_bf16_f32 v{T(i,0)}, 0, v{T(i,0)}"); L.append(f"v_cvt_pk_bf16_f32 v{T(i,1)}, 0, v{T(i,1)}")
    return L
def xunpack(xr, U):
    L=[]
    for i in range(4):
        L.append(f"v_lshlrev_b32 v{U(i,0)}, 16, v{xr+i}"); L.append(f"v_and_b32 v{U(i,1)}, s14, v{xr+i}")
    return L
def fin(xr, U, T):
    L=[]
    for i in range(4): L.append(f"v_pk_add_f32 v[{U(i,0)}:{U(i,1)}], v[{U(i,0)}:{U(i,1)}], v[{T(i,0)}:{T(i,1)}]")
    for i in range(4): L.append(f"v_cvt_pk_bf16_f32 v{xr+i}, v{U(i,0)}, v{U(i,1)}")
    return L

def gen(block=1024, step=None):
    nwg = TOTAL//(block*32); step = step or block*16
    lg=int(math.log2(block*32))
    L=[]; A=L.append
    A("s_load_dwordx8 s[4:11], s[0:1], 0")
    A(f"s_lshl_b32 s3, s2, {lg}")
    A("v_lshl_add_u32 v0, v0, 4, s3")
    A(f"s_cmpk_ge_u32 s2, {nwg}")
    A("s_cbranch_scc1 L_done")
    A(f"v_add_u32 v1, {step}, v0")
    A("s_waitcnt lgkmcnt(0)")
    A("s_load_dword s12, s[8:9], 0")
    A("global_load_dwordx4 v[12:15], v0, s[6:7]")
    A("global_load_dwordx4 v[16:19], v1, s[4:5]")
    A("s_mov_b32 s14, 0xffff0000")
    A("s_waitcnt vmcnt(0)")
    A("global_load_dwordx4 v[20:23], v1, s[6:7]")
    A("global_load_dwordx4 v[8:11], v0, s[4:5]")
    A("s_waitcnt lgkmcnt(0)"); A("s_lshl_b32 s12, s12, 16"); A("s_mov_b32 s13, s12")
    T0=lambda i,k: 24+2*i+k; T1=lambda i,k: 32+2*i+k; U1=lambda i,k: 40+2*i+k; U0=lambda i,k: 48+2*i+k
    L.extend(tpart(12,T0)); L.extend(xunpack(16,U1))
    A("s_waitcnt vmcnt(1)")
    L.extend(tpart(20,T1)); L.extend(fin(16,U1,T1))
    A("global_store_dwordx4 v1, v[16:19], s[10:11]")
    A("s_waitcnt vmcnt(1)")
    L.extend(xunpack(8,U0)); L.extend(fin(8,U0,T0))
    A("global_store_dwordx4 v0, v[8:11], s[10:11]")
    A("L_done:"); A("s_endpgm")
    r=wrap(L,nwg,block,56,16)
    return r.replace(".text\n",".text\n.p2align 12\n",1), nwg
if __name__=="__main__":
    for k,kw in {"x1024":dict(),"x512":dict(block=512)}.items():
        s,n=gen(**kw); open(f"f16_{k}.s","w").write(s)
```
